```python
import torch

def _softmax(x, axis=-1):
    return torch.softmax(x, dim=axis)
def _gelu(x):
    return torch.nn.functional.gelu(x, approximate="tanh")
def _silu(x):
    return torch.nn.functional.silu(x)
def _sigmoid(x):
    return torch.sigmoid(x)
def _layernorm(x, axis=-1, eps=1e-5):
    m = x.mean(dim=axis, keepdim=True)
    v = x.var(dim=axis, keepdim=True, unbiased=False)
    return (x - m) / torch.sqrt(v + eps)
def _scatter_add(tgt, idx, src, axis=0):
    return tgt.clone().index_add_(axis, idx, src)
def _segment_sum(src, seg, n):
    out = torch.zeros((n,) + src.shape[1:], dtype=src.dtype)
    return out.index_add_(0, seg, src)
def _pad(x, pw):
    flat = tuple(v for pair in reversed(pw) for v in pair)
    return torch.nn.functional.pad(x, flat)

kernel_name = 'parallel_sum__ssm_conv_h3__mixer_s_mlp__prompt'

def setup_inputs():

    _w = (lambda a: (lambda t: t.to(torch.bfloat16) if t.is_floating_point() else t)(torch.as_tensor(a)))
    def _A_setup():
        B, S, D = 1, 2048, 448
        ks = 4
        return {
            "q": _w((lambda *s: torch.randn(*s, dtype=torch.bfloat16) * 0.05)(B, S, D)),
            "k": _w((lambda *s: torch.randn(*s, dtype=torch.bfloat16) * 0.8)(B, S, D)),
            "v": _w((lambda *s: torch.randn(*s, dtype=torch.bfloat16) * 0.8)(B, S, D)),
            "shift_k": _w((lambda *s: torch.randn(*s, dtype=torch.bfloat16) * 0.8)(D, ks) * 0.5),
            "ssm_k": _w((lambda *s: torch.randn(*s, dtype=torch.bfloat16) * 1.6)(D, S) * (1.0 / S ** 0.5)),
            "ssm_D": _w((lambda *s: torch.randn(*s, dtype=torch.bfloat16) * 0.8)(D)),
        }
    _A_in = _A_setup()

    def _B_setup():
        B, S, D, F = 1, 2048, 448, 1792
        return {
            "x":  _w((lambda *s: torch.randn(*s, dtype=torch.bfloat16) * 0.05)(B, S, D)),
            "w1": _w((lambda *s: torch.randn(*s, dtype=torch.bfloat16) * 3.2)(D, D) * (D ** -0.5)),
            "w2": _w((lambda *s: torch.randn(*s, dtype=torch.bfloat16) * 3.2)(D, D) * (D ** -0.5)),
            "w3": _w((lambda *s: torch.randn(*s, dtype=torch.bfloat16) * 3.2)(D, F) * (D ** -0.5)),
            "w4": _w((lambda *s: torch.randn(*s, dtype=torch.bfloat16) * 1.6)(F, D) * (F ** -0.5)),
        }
    _B_in = _B_setup()

    return {
        "A_q": _A_in["q"],
        "A_k": _A_in["k"],
        "A_v": _A_in["v"],
        "A_shift_k": _A_in["shift_k"],
        "A_ssm_k": _A_in["ssm_k"],
        "A_ssm_D": _A_in["ssm_D"],
        "B_x": _B_in["x"],
        "B_w1": _B_in["w1"],
        "B_w2": _B_in["w2"],
        "B_w3": _B_in["w3"],
        "B_w4": _B_in["w4"],
    }

def reference(A_q, A_k, A_v, A_shift_k, A_ssm_k, A_ssm_D, B_x, B_w1, B_w2, B_w3, B_w4):
    def _A_ref(q, k, v, shift_k, ssm_k, ssm_D):
        B, S, D = q.shape
        ks = shift_k.shape[-1]
        k_pad = _pad(k, ((0, 0), (ks - 1, 0), (0, 0)))
        k_shift = torch.zeros_like(k)
        for t in range(ks):
            k_shift = k_shift + k_pad[:, t:t + S, :] * shift_k[:, ks - 1 - t][None, None, :]
        kv = k_shift * v
        L = 2 * S
        kv_pad = _pad(kv, ((0, 0), (0, S), (0, 0)))
        kf_pad = _pad(ssm_k, ((0, 0), (0, S)))
        kv_f = (lambda x, axes=(-2,-1): torch.fft.rfft2(x.float(), dim=axes))(kv_pad[:, None, :, :], axes=(1, 2))
        kf_f = (lambda x, axes=(-2,-1): torch.fft.rfft2(x.float(), dim=axes))(kf_pad[:, None, :], axes=(1, 2))
        kf_f = (lambda x, *d: x.permute(*d))(kf_f, 1, 2, 0)
        y_f = kv_f * kf_f[None, :, :, :]
        y = (lambda x, s, axes=(-2,-1): torch.fft.irfft2(x, s=s, dim=axes).to(torch.bfloat16))(y_f, (1, L), axes=(1, 2))[:, 0, :S, :]
        y = y + kv * ssm_D[None, None, :]
        return q * y

    def _B_ref(x, w1, w2, w3, w4):
        B, S, D = x.shape
        h = _gelu(_layernorm(x, axis=-1) @ w1)
        c = D // 4
        g0 = _pad(h[:, :, 0*c:1*c], ((0, 0), (1, 0), (0, 0)))[:, :S, :]
        g1 = _pad(h[:, :, 1*c:2*c], ((0, 0), (0, 1), (0, 0)))[:, 1:, :]
        g2 = _pad(h[:, :, 2*c:3*c], ((0, 0), (2, 0), (0, 0)))[:, :S, :]
        g3 = _pad(h[:, :, 3*c:   ], ((0, 0), (0, 2), (0, 0)))[:, 2:, :]
        hs = torch.concatenate([g0, g1, g2, g3], axis=-1) @ w2
        x1 = x + hs
        h2 = _gelu(_layernorm(x1, axis=-1) @ w3) @ w4
        return x1 + h2

    x = A_q
    xn = _layernorm(x, axis=-1)
    return x + _A_ref(xn, A_k, A_v, A_shift_k, A_ssm_k, A_ssm_D) + _B_ref(xn, B_w1, B_w2, B_w3, B_w4)
```

```python
import re

TRANS = ("v_exp_f32", "v_log_f32", "v_rcp_f32", "v_rsq_f32", "v_sqrt_f32", "v_sin_f32", "v_cos_f32")


class I:
    __slots__ = ("t", "tag", "kind", "cond", "w")

    def __init__(self, t, tag=None, kind="i", cond=False, w=None):
        self.t, self.tag, self.kind, self.cond, self.w = t, tag, kind, cond, w


def regs(op):
    op = op.strip().lstrip("-")
    if op.startswith("abs("):
        op = op[4:-1]
    op = op.strip("|")
    m = re.fullmatch(r"([vas])\[(\d+):(\d+)\]", op)
    if m:
        return {m.group(1) + str(i) for i in range(int(m.group(2)), int(m.group(3)) + 1)}
    if re.fullmatch(r"[vas]\d+", op):
        return {op}
    if op == "vcc":
        return {"vcc"}
    if op in ("m0", "exec"):
        return {op}
    return set()


class Dec:
    pass


def decode(t):
    d = Dec()
    parts = t.split(None, 1)
    d.mn = parts[0]
    rest = parts[1] if len(parts) > 1 else ""
    ops = [o.strip() for o in rest.split(",")] if rest else []
    raw = ops
    ops = [o.split()[0] if o else o for o in ops]
    mn = d.mn
    d.cls = "other"
    d.defs, d.uses = set(), set()
    d.A = d.B = d.C = set()
    d.passes = 0
    d.wide_store = set()
    u = lambda L: set().union(*[regs(o) for o in L]) if L else set()
    if mn.startswith("v_mfma"):
        d.cls = "mfma"
        d.defs = regs(ops[0])
        d.A, d.B, d.C = regs(ops[1]), regs(ops[2]), regs(ops[3])
        d.uses = d.A | d.B | d.C
        d.passes = 8 if "32x32x16" in mn else 4
        assert "32x32x16_bf16" in mn or "16x16x32_bf16" in mn
    elif mn.startswith("v_"):
        d.cls = "valu"
        d.defs = regs(ops[0])
        d.uses = u(ops[1:])
        if "permlane" in mn:
            d.defs = u(ops)
            d.uses = u(ops)
        if mn.startswith(("v_fmac", "v_dot2c", "v_writelane")) or "dpp" in mn:
            d.uses |= d.defs
        if mn.startswith(("v_add_co", "v_sub_co", "v_addc_co")):
            d.defs |= regs(ops[1])
            d.uses = u(ops[2:])
    elif mn.startswith("ds_"):
        d.cls = "ds"
        if mn.startswith(("ds_read", "ds_bpermute", "ds_swizzle")):
            d.defs = regs(ops[0])
            d.uses = u(ops[1:])
        else:
            d.uses = u(ops)
    elif mn.startswith(("buffer_", "global_")):
        d.cls = "vmem"
        if mn in ("buffer_wbl2", "buffer_inv"):
            pass
        elif " lds" in " " + rest or "load_lds" in mn:
            d.uses = u(ops) | {"m0"}
            d.dma = True
        elif "load" in mn:
            d.defs = regs(ops[0])
            d.uses = u(ops[1:])
        else:
            d.uses = u(ops)
            if "x4" in mn or "x3" in mn:
                d.wide_store = regs(ops[0]) if mn.startswith("buffer_") else regs(ops[1])
    elif mn.startswith("s_"):
        d.cls = "salu"
        if mn.startswith(("s_cmp", "s_cbranch", "s_branch", "s_waitcnt", "s_barrier", "s_nop", "s_sleep",
                          "s_endpgm", "s_setprio")):
            d.uses = u(ops)
        else:
            d.defs = regs(ops[0])
            d.uses = u(ops[1:])
            if "saveexec" in mn:
                d.defs |= {"exec"}
    d.states = 1
    if mn == "s_nop":
        d.states = int(ops[0]) + 1
    return d


def need(p, c):
    n = 0
    va = lambda S: {r for r in S if r[0] in "va" and r != "vcc"}
    sg = lambda S: {r for r in S if r[0] == "s" or r == "vcc"}
    if p.cls == "valu":
        pv, ps = va(p.defs), sg(p.defs)
        isdot = p.mn.startswith("v_dot")
        if c.cls == "mfma" and pv & c.uses:
            n = max(n, 3 if isdot else 2)
        if c.cls == "valu":
            if pv & c.uses:
                if "permlane" in c.mn or "dpp" in c.mn:
                    n = max(n, 2)
                if c.mn.startswith(("v_readlane", "v_readfirstlane")):
                    n = max(n, 1)
                if p.mn.replace("_e32", "").replace("_e64", "") in TRANS:
                    n = max(n, 1)
                if "sdwa" in p.mn:
                    n = max(n, 1)
            if isdot and pv & (c.uses | c.defs) and c.mn != p.mn:
                n = max(n, 3)
            if ps & c.uses:
                n = max(n, 4 if c.mn.startswith(("v_readlane", "v_writelane")) else 2)
        if isdot and c.cls in ("ds", "vmem") and pv & c.uses:
            n = max(n, 3)
        if c.cls == "vmem" and ps & c.uses:
            n = max(n, 5)
        if c.cls == "salu" and ps & c.uses:
            n = max(n, 1)
    if p.cls == "mfma":
        far = {4: 8, 8: 12}[p.passes]
        if c.cls == "mfma":
            if p.defs & (c.A | c.B):
                n = max(n, far)
            if p.defs & c.C and not (p.defs == c.C and p.passes == c.passes):
                n = max(n, {4: 6, 8: 10}[p.passes])
            if p.defs & c.defs and not (p.defs == c.C and p.passes == c.passes):
                n = max(n, {4: 6, 8: 10}[p.passes])
        elif c.cls in ("valu", "ds", "vmem"):
            if p.defs & (c.uses | c.defs):
                n = max(n, far)
            if c.cls == "valu" and p.C & c.defs:
                n = max(n, {4: 3, 8: 7}[p.passes])
    if p.cls == "salu" and "m0" in p.defs and "m0" in c.uses and c.cls == "vmem":
        n = max(n, 1)
    if p.cls == "vmem" and p.wide_store & c.defs:
        n = max(n, 2)
    return n


class Asm:
    def __init__(self):
        self.L = []

    def __call__(self, t, tag=None, cond=False):
        for line in t.strip().split("\n"):
            line = line.split(";")[0].strip()
            if line:
                self.L.append(I(line, tag, "i", cond))
        return self

    def label(self, name):
        self.L.append(I(name + ":", kind="label"))

    def comment(self, t):
        self.L.append(I("; " + t, kind="raw"))

    def raw(self, t):
        self.L.append(I(t, kind="raw"))

    def wvm(self, *tags):
        self.L.append(I(None, kind="wvm", w=tags))

    def wds(self, *tags):
        self.L.append(I(None, kind="wds", w=tags))

    def reset(self):
        self.L.append(I(None, kind="reset"))

    def ext(self, other):
        self.L.extend(other.L if isinstance(other, Asm) else other)

    def resolve(self):
        out = []
        vm, ds = [], []
        vm_done = ds_done = 0
        for it in self.L:
            if it.kind == "reset":
                vm, ds, vm_done, ds_done = [], [], 0, 0
                continue
            if it.kind in ("wvm", "wds"):
                q, done, mx = (vm, vm_done, 63) if it.kind == "wvm" else (ds, ds_done, 15)
                if it.w == ("*",):
                    last = len(q) - 1
                else:
                    idx = [i for i, (t, c) in enumerate(q) if t in it.w]
                    for t in it.w:
                        assert any(tt == t for tt, c in q), f"wait on unknown tag {t}"
                    last = max(idx)
                if last < done:
                    continue
                n = sum(1 for (t, c) in q[last + 1:] if not c)
                n = min(n, mx)
                if it.kind == "wvm":
                    out.append(I(f"s_waitcnt vmcnt({n})"))
                    vm_done = last + 1
                else:
                    out.append(I(f"s_waitcnt lgkmcnt({n})"))
                    ds_done = last + 1
                continue
            if it.kind == "i":
                mn = it.t.split()[0]
                if mn.startswith(("buffer_", "global_")):
                    vm.append((it.tag, it.cond))
                elif mn.startswith("ds_"):
                    ds.append((it.tag, it.cond))
                elif mn == "s_waitcnt" and not it.cond:
                    if "vmcnt(0)" in it.t:
                        vm_done = len(vm)
                    if "lgkmcnt(0)" in it.t:
                        ds_done = len(ds)
            out.append(it)
        self.L = out

    def pad(self):
        out = []
        hist = []
        for it in self.L:
            if it.kind != "i":
                out.append(it)
                continue
            d = decode(it.t)
            dist = 0
            req = 0
            for p in reversed(hist):
                r = need(p, d) - dist
                if r > req:
                    req = r
                dist += p.states
                if dist >= 20:
                    break
            if req > 0:
                nop = I(f"s_nop {req - 1}")
                out.append(nop)
                hist.append(decode(nop.t))
            out.append(it)
            hist.append(d)
            if len(hist) > 32:
                hist = hist[-24:]
        self.L = out

    def text(self):
        self.resolve()
        self.pad()
        s = []
        for it in self.L:
            if it.kind == "label":
                s.append(it.t)
            else:
                s.append("    " + it.t)
        return "\n".join(s) + "\n"


def weave(main, fill, start=0, per=None, end=None):
    M = main.L if isinstance(main, Asm) else main
    F = list(fill.L if isinstance(fill, Asm) else fill)
    pos = [i for i, it in enumerate(M) if it.kind == "i" and it.t.startswith("v_mfma")]
    pos = pos[start:end]
    n = len(pos)
    out = []
    fi = 0
    k = 0
    ps = set(pos)
    real = [i for i, it in enumerate(F) if it.kind == "i"]
    for i, it in enumerate(M):
        out.append(it)
        if i in ps:
            k += 1
            tgt = (len(real) * k + n - 1) // n if per is None else min(len(real), per * k)
            if k == n:
                tgt = len(real)
            lim = real[tgt - 1] + 1 if tgt > 0 else 0
            if k == n:
                lim = len(F)
            while fi < lim:
                out.append(F[fi])
                fi += 1
    assert fi == len(F)
    r = Asm()
    r.L = out
    return r
```

```python
import struct, sys, math
from asmlib import Asm, weave

NAME = "parallel_sum__ssm_conv_h3__mixer_s_mlp__prompt"
OPT = dict(stamps=False)

S, D, F = 2048, 448, 1792
WS_FLAGS, WS_H, WS_X1, WS_XS, WS_KVT, WS_Y, WS_H3, WS_ST, WS_END = (
    0, 0x10000, 0x200000, 0x400000, 0x480000, 0x680000, 0x880000, 0x1000000, 0x1100000)
CP = 4224
U = 28672
R0, R1, R2, R3 = 0, 61440, 118784, 147456
ST1 = R3
ST3 = R3 + 2304
YL = R3 + 8192
LDS_BYTES = 163840
SPIN = 1 << 20


def f2u(x):
    return "0x%08x" % struct.unpack("<I", struct.pack("<f", x))[0]


C0 = -2.0 * math.log2(math.e) * math.sqrt(2.0 / math.pi)
C1 = C0 * 0.044715
EPS = 1e-5

Q, K, V, SK, W1, W2, W3, W4, OUT, WS, DBG = ("s[%d:%d]" % (4 + 4 * i, 7 + 4 * i) for i in range(11))
SSK, SSD = K, V
sW, sRB, sJ, sF, sC, sID = "s48", "s49", "s50", "s51", "s52", "s53"
sOFF, sCNT, sT0, sT1, sT2, sT3 = "s54", "s55", "s56", "s57", "s58", "s59"
sL7, sL14, sL15, sONES = "s60", "s61", "s62", "s63"
sEX = "s[64:65]"
ST0 = 68


def v(a, n=1):
    return f"v{a}" if n == 1 else f"v[{a}:{a + n - 1}]"


def a(x, n=1):
    return f"a{x}" if n == 1 else f"a[{x}:{x + n - 1}]"


def srd(A, quad, slot, nbytes):
    b = int(quad[2:].split(":")[0])
    A(f"s_load_dwordx2 s[{b}:{b + 1}], s[0:1], {slot * 8}")
    A(f"s_mov_b32 s{b + 2}, {nbytes}")
    A(f"s_mov_b32 s{b + 3}, 0x20000")


def dma(vaddr, quad, src0, stride, n, lbase, l0, tag, sc1=False, alt=None):
    A = Asm()
    last = None
    for i in range(n):
        if i % 4 == 0:
            if lbase is None:
                A(f"s_mov_b32 m0, {l0 + 1024 * i}")
            else:
                A(f"s_add_u32 m0, {lbase}, {l0 + 1024 * i}")
        so = src0 + stride * i - 1024 * (i % 4)
        assert so >= 0
        if so == 0:
            sop = "0"
        else:
            if so != last:
                A(f"s_mov_b32 {sOFF}, {so}")
                last = so
            sop = sOFF
        va = vaddr if (alt is None or i % 2 == 0) else alt
        off = f" offset:{1024 * (i % 4)}" if i % 4 else ""
        t = tag(i) if callable(tag) else tag
        A(f"buffer_load_dwordx4 {va}, {quad}, {sop} offen{off}{' sc1' if sc1 else ''} lds", tag=t)
    return A


_lab = [0]


def newlabel(p):
    _lab[0] += 1
    return f"L_{p}{_lab[0]}"


def spin(A, vaddr, quad, vt, minval, cond=False):
    L, E = newlabel("spin"), newlabel("spun")
    A(f"s_mov_b32 {sCNT}, 0")
    A.label(L)
    A(f"buffer_load_dword {vt}, {vaddr}, {quad}, 0 offen sc1", cond=True)
    A("s_waitcnt vmcnt(0)", cond=cond)
    A(f"v_cmp_gt_u32 vcc, {minval}, {vt}")
    A(f"s_cbranch_vccz {E}")
    A(f"s_add_u32 {sCNT}, {sCNT}, 1")
    A(f"s_cmp_lt_u32 {sCNT}, {SPIN}")
    A(f"s_cbranch_scc1 {L}")
    A.label(E)


def check_or_spin(A, tag, vaddr, quad, vt, minval):
    E = newlabel("ok")
    A.wvm(tag)
    A(f"v_cmp_gt_u32 vcc, {minval}, {vt}")
    A(f"s_cbranch_vccz {E}")
    spin(A, vaddr, quad, vt, minval, cond=True)
    A.label(E)


def setflag(A, vaddr, vt, val):
    E = newlabel("nf")
    A(f"s_cmp_lg_u32 {sW}, 0")
    A(f"s_cbranch_scc1 {E}")
    A(f"v_mov_b32 {vt}, {val}")
    A("s_mov_b64 exec, 1")
    A(f"buffer_store_dword {vt}, {vaddr}, {WS}, 0 offen sc1", cond=True)
    A("s_mov_b64 exec, -1")
    A.label(E)


def stamp(A, n):
    if OPT["stamps"]:
        A("s_memtime s[66:67]")
        A("s_waitcnt lgkmcnt(0)")
        A(f"s_mov_b32 s{ST0 + n}, s66")


def stamps_out(A, n):
    if not OPT["stamps"]:
        return
    E = newlabel("ns")
    A(f"s_cmp_lg_u32 {sW}, 0")
    A(f"s_cbranch_scc1 {E}")
    A("s_memrealtime s[66:67]")
    A("s_waitcnt lgkmcnt(0)")
    A(f"s_mov_b32 s{ST0 + 1}, s66")
    A("v_mov_b32 v2, 0")
    for i in range(n):
        A(f"v_writelane_b32 v2, s{ST0 + i}, {i}")
    A("v_and_b32 v3, 63, v0")
    A("v_lshlrev_b32 v3, 2, v3")
    A(f"s_lshl_b32 {sT0}, s2, 8")
    A(f"s_add_u32 {sT0}, {sT0}, {WS_ST}")
    A(f"buffer_store_dword v2, v3, {WS}, {sT0} offen")
    A.label(E)


def gelu(acc, cs, K4, tmp, out, n, grp=4):
    A = Asm()
    for g in range(0, n, grp):
        R = range(g, g + grp)
        T = lambda i: v(tmp + (i % (2 * grp)))
        for i in R: A(f"v_fmac_f32 {v(acc + i)}, {v(K4)}, {v(cs(i))}")
        for i in R: A(f"v_mul_f32 {T(i)}, {v(acc + i)}, {v(acc + i)}")
        for i in R: A(f"v_fma_f32 {T(i)}, {T(i)}, {v(K4 + 2)}, {v(K4 + 1)}")
        for i in R: A(f"v_mul_f32 {T(i)}, {v(acc + i)}, {T(i)}")
        for i in R: A(f"v_exp_f32 {T(i)}, {T(i)}")
        for i in R: A(f"v_fma_f32 {T(i)}, {T(i)}, {v(K4 + 3)}, {v(K4 + 3)}")
        for i in R: A(f"v_rcp_f32 {T(i)}, {T(i)}")
        for i in R: A(f"v_mul_f32 {T(i)}, {v(acc + i)}, {T(i)}")
        for i in range(g, g + grp, 2): A(f"v_cvt_pk_bf16_f32 {v(out + i // 2)}, {T(i)}, {T(i + 1)}")
    return A


def gelu_pk(acc, cs, K4f, tmp, out, n, grp=8):
    A = Asm()
    for g in range(0, n, grp):
        P = range(g, g + grp, 2)
        R = range(g, g + grp)
        T = lambda i, k=1: v(tmp + (i % grp), k)
        for i in P: A(f"v_pk_fma_f32 {v(acc + i, 2)}, {v(cs(i), 2)}, {v(K4f(i), 2)}, {v(acc + i, 2)} op_sel_hi:[1,0,1]")
        for i in P: A(f"v_pk_mul_f32 {T(i, 2)}, {v(acc + i, 2)}, {v(acc + i, 2)}")
        for i in P: A(f"v_pk_fma_f32 {T(i, 2)}, {T(i, 2)}, {v(K4f(i) + 2, 2)}, {v(K4f(i), 2)} op_sel:[0,0,1] op_sel_hi:[1,0,1]")
        for i in P: A(f"v_pk_mul_f32 {T(i, 2)}, {v(acc + i, 2)}, {T(i, 2)}")
        for i in R: A(f"v_exp_f32 {T(i)}, {T(i)}")
        for i in P: A(f"v_pk_fma_f32 {T(i, 2)}, {T(i, 2)}, {v(K4f(i) + 2, 2)}, {v(K4f(i) + 2, 2)} op_sel:[0,1,1] op_sel_hi:[1,1,1]")
        for i in R: A(f"v_rcp_f32 {T(i)}, {T(i)}")
        for i in P: A(f"v_pk_mul_f32 {T(i, 2)}, {v(acc + i, 2)}, {T(i, 2)}")
        for i in P: A(f"v_cvt_pk_bf16_f32 {v(out + i // 2)}, {T(i)}, {T(i + 1)}")
    return A


def unpack(A, dst, src):
    A(f"v_lshlrev_b32 {v(dst)}, 16, {v(src)}")
    A(f"v_and_b32 {v(dst + 1)}, 0xffff0000, {v(src)}")


def gemm_path(A):
    vL, vL16, vTR32, vTR32b, vTR3, vW24, vW3, vFLAG, vPOLL, vT, vZ, vT2 = 1, 2, 3, 4, 5, 6, 7, 8, 9, 10, 11, 12
    VW3 = 16
    WK = 128
    AW2, AW1, AXN, ABASE = 0, 112, 224, 240

    srd(A, K, 1, S * D * 2)
    srd(A, V, 2, S * D * 2)
    srd(A, SK, 3, D * 8)
    srd(A, Q, 0, S * D * 2)
    srd(A, W1, 7, D * D * 2)
    srd(A, W3, 9, D * F * 2)
    srd(A, WS, 13, WS_END)
    A(f"""
    s_mul_i32 {sT0}, {sT1}, 37
    s_lshr_b32 {sT0}, {sT0}, 8                 ; slot/7
    s_mul_i32 {sT2}, {sT0}, 7
    s_sub_u32 {sJ}, {sT1}, {sT2}
    s_and_b32 {sT2}, s2, 7
    s_lshl_b32 {sT2}, {sT2}, 2
    s_add_u32 {sRB}, {sT2}, {sT0}
    s_lshr_b32 {sC}, {sRB}, 1
    s_mul_i32 {sID}, {sRB}, 7
    s_add_u32 {sID}, {sID}, {sJ}
    s_mul_i32 {sT2}, {sC}, 14
    s_sub_u32 {sF}, {sID}, {sT2}
    s_mul_i32 {sL7}, {sW}, 7168
    s_mul_i32 {sL14}, {sW}, 14336
    s_mul_i32 {sL15}, {sW}, 15360
    s_mov_b32 {sONES}, 0x3f803f80
    v_lshlrev_b32 {v(vL16)}, 4, {v(vL)}
    v_mov_b32 {v(vZ)}, 0
    """)
    kA0, kA1, kM3, kM2, kM1, kS, kO = (WK + i for i in range(7))
    kR, vR, sR = WK + 8, WK + 20, WK + 28
    A(f"""
    s_mul_i32 {sT0}, {sRB}, {64 * 896}
    s_lshl_b32 {sT2}, {sJ}, 6
    s_lshl_b32 {sT3}, {sW}, 4
    s_add_u32 {sT2}, {sT2}, {sT3}
    s_lshl_b32 {sT3}, {sT2}, 1
    s_add_u32 {sT0}, {sT0}, {sT3}
    v_lshrrev_b32 {v(vT)}, 3, {v(vL)}
    v_and_b32 {v(vT2)}, 7, {v(vL)}
    v_mul_u32_u24 {v(kA0)}, 7168, {v(vT)}
    v_lshl_add_u32 {v(kA0)}, {v(vT2)}, 2, {v(kA0)}
    v_add_u32 {v(kA0)}, {sT0}, {v(kA0)}
    v_add_u32 {v(kA1)}, 3584, {v(kA0)}
    v_subrev_u32 {v(kM3)}, 2688, {v(kA0)}
    v_subrev_u32 {v(kM2)}, 1792, {v(kA0)}
    v_subrev_u32 {v(kM1)}, 896, {v(kA0)}
    v_lshl_add_u32 {v(kS)}, {v(vT2)}, 1, {sT2}  ; channel
    v_mul_u32_u24 {v(kO)}, {CP}, {v(kS)}
    v_lshlrev_b32 {v(kS)}, 3, {v(kS)}
    s_lshl_b32 {sT0}, {sRB}, 7
    s_sub_u32 {sT0}, {WS_KVT + 4080}, {sT0}
    v_lshlrev_b32 {v(vT)}, 4, {v(vT)}
    v_sub_u32 {v(kO)}, {v(kO)}, {v(vT)}
    v_add_u32 {v(kO)}, {sT0}, {v(kO)}
    """)
    xA0, xA1, xA2, w1A, w1B = 13, 14, 15, WK + 120, WK + 121
    A(f"""
    s_mul_i32 {sT0}, {sW}, 119
    v_lshrrev_b32 {v(vT)}, 3, {v(vL)}
    v_add_u32 {v(xA0)}, {sT0}, {v(vT)}          ; u
    v_and_b32 {v(xA1)}, 6, {v(xA0)}             ; phi(u)
    v_xor_b32 {v(xA1)}, {v(vT2)}, {v(xA1)}
    v_lshlrev_b32 {v(xA1)}, 4, {v(xA1)}
    v_lshl_add_u32 {v(xA0)}, {v(xA0)}, 7, {v(xA1)}
    s_mul_i32 {sT0}, {sRB}, {64 * 896}
    s_sub_u32 {sT0}, {sT0}, 1792
    v_add_u32 {v(xA0)}, {sT0}, {v(xA0)}
    v_add_u32 {v(xA1)}, 1024, {v(xA0)}
    v_add_u32 {v(xA2)}, 2048, {v(xA0)}
    """)
    A(f"""
    s_mul_i32 {sT0}, {sW}, {112 * 896}
    s_lshl_b32 {sT2}, {sJ}, 7
    s_add_u32 {sT0}, {sT0}, {sT2}
    v_and_b32 {v(w1A)}, 2, {v(vT)}
    v_xor_b32 {v(w1A)}, {v(vT2)}, {v(w1A)}
    v_lshlrev_b32 {v(w1A)}, 4, {v(w1A)}
    v_xor_b32 {v(w1B)}, 64, {v(w1A)}
    v_mul_u32_u24 {v(vW24)}, 896, {v(vT)}
    v_add3_u32 {v(w1A)}, {v(w1A)}, {v(vW24)}, {sT0}
    v_add3_u32 {v(w1B)}, {v(w1B)}, {v(vW24)}, {sT0}
    s_waitcnt lgkmcnt(0)
    """)
    stamp(A, 2)
    for i in range(11):
        ad, of = ((kM3, 0), (kM2, 0), (kM1, 0))[i] if i < 3 else ((kA0, 896 * (i - 3)) if i < 7 else (kA1, 896 * (i - 7)))
        A(f"buffer_load_dword {v(kR + i)}, {v(ad)}, {K}, 0 offen offset:{of}", tag="kv")
    for i in range(8):
        ad, of = (kA0, 896 * i) if i < 4 else (kA1, 896 * (i - 4))
        A(f"buffer_load_dword {v(vR + i)}, {v(ad)}, {V}, 0 offen offset:{of}", tag="kv")
    A(f"buffer_load_dwordx4 {v(sR, 4)}, {v(kS)}, {SK}, 0 offen", tag="kv")
    A(f"s_mul_i32 {sT3}, {sW}, 15232")
    A.ext(dma(v(xA0), Q, 0, 1024, 1, sT3, R0, "x"))
    A.ext(dma(v(xA1), Q, 0, 1024, 1, sT3, R0 + 1024, "x"))
    A.ext(dma(v(xA2), Q, 0, 1024, 13, sT3, R0 + 2048, "x"))
    A.ext(dma(v(w1A), W1, 0, 7168, 14, sL14, R1, "w1", alt=v(w1B)))
    srd(A, W2, 8, D * D * 2)
    srd(A, W4, 10, D * F * 2)
    srd(A, OUT, 11, S * D * 2)
    srd(A, DBG, 12, 256)
    A(f"""
    v_and_b32 {v(vW3)}, 2, {v(vT)}
    v_lshlrev_b32 {v(vW3)}, 1, {v(vW3)}
    v_xor_b32 {v(vW3)}, {v(vT2)}, {v(vW3)}
    v_lshl_add_u32 {v(vW24)}, {v(vW3)}, 4, {v(vW24)}
    s_lshl_b32 {sT2}, {sJ}, 7
    v_add_u32 {v(vW24)}, {sT2}, {v(vW24)}
    v_lshrrev_b32 {v(vT)}, 2, {v(vL)}
    v_mul_u32_u24 {v(vW3)}, 3584, {v(vT)}
    v_and_b32 {v(vT2)}, 3, {v(vL)}              ; c
    v_lshl_add_u32 {v(vW3)}, {v(vT2)}, 4, {v(vW3)}
    s_lshl_b32 {sT0}, {sF}, 8
    s_lshl_b32 {sT2}, {sW}, 6
    s_add_u32 {sT0}, {sT0}, {sT2}
    v_add_u32 {v(vW3)}, {sT0}, {v(vW3)}
    v_and_b32 {v(vT)}, 3, {v(vT)}               ; r
    v_lshrrev_b32 {v(vTR3)}, 5, {v(vL)}
    v_lshl_add_u32 {v(vTR3)}, {v(vTR3)}, 2, {v(vT)}   ; 4hf+r
    v_lshlrev_b32 {v(vT2)}, 3, {v(vT2)}         ; 8c
    v_and_b32 {v(vTR32b)}, 16, {v(vL)}
    v_lshl_add_u32 {v(vT2)}, {v(vTR32b)}, 1, {v(vT2)} ; 32ch+8c
    v_lshl_add_u32 {v(vTR32)}, {v(vTR3)}, 7, {v(vT2)}
    v_lshl_add_u32 {v(vTR3)}, {v(vTR3)}, 6, {v(vT2)}
    v_lshrrev_b32 {v(vT)}, 1, {v(vT)}           ; bit1(r)
    s_and_b32 {sT0}, {sW}, 1
    v_xor_b32 {v(vT)}, {sT0}, {v(vT)}
    v_lshl_add_u32 {v(vTR32)}, {v(vT)}, 6, {v(vTR32)}
    v_xor_b32 {v(vTR32b)}, 64, {v(vTR32)}
    s_lshl_b32 {sT0}, {sID}, 7
    v_mov_b32 {v(vFLAG)}, {sT0}
    s_waitcnt lgkmcnt(0)
    """)

    def w3_issue(p0, n, lbase, l0):
        return dma(v(vW3), W3, p0 * 16 * 3584, 16 * 3584, n, lbase, l0, lambda i: f"w3_{p0 + i}")

    def w4_issue(p0, n, lbase, l0):
        return dma(v(vW24), W4, p0 * 7168, 7168, n, lbase, l0, lambda i: f"w4_{p0 + i}")

    def w3_take(p0, n, lbase, l0):
        B = Asm()
        B.wvm(f"w3_{p0 + n - 1}")
        B(f"s_add_u32 {sT0}, {lbase}, {l0}")
        B(f"v_add_u32 {v(vT)}, {sT0}, {v(vTR3)}")
        for i in range(n):
            for e in range(2):
                B(f"ds_read_b64_tr_b16 {v(VW3 + 4 * (p0 + i) + 2 * e, 2)}, {v(vT)} offset:{1024 * i + 512 * e}", tag="wt")
        return B

    def w4_take(p0, n, lbase, l0):
        B = Asm()
        B.wvm(f"w4_{p0 + n - 1}")
        B(f"s_add_u32 {sT0}, {lbase}, {l0}")
        B(f"v_add_u32 {v(vT)}, {sT0}, {v(vTR32)}")
        B(f"v_add_u32 {v(vT2)}, {sT0}, {v(vTR32b)}")
        for i in range(n):
            p = p0 + i
            for sl in range(2):
                B(f"ds_read_b64_tr_b16 {a(8 * (p >> 1) + 4 * sl + 2 * (p & 1), 2)}, {v((vT, vT2)[sl])} offset:{1024 * i}", tag="wt")
        return B

    kU, vU, sU, kAcc, kP = WK + 32, WK + 54, WK + 70, WK + 78, WK + 96
    A.wvm("kv")
    stamp(A, 3)
    for i in range(11): unpack(A, kU + 2 * i, kR + i)
    for t in range(2):
        A(f"v_lshlrev_b32 {v(sU + 4 * t)}, 16, {v(sR + t)}")
        A(f"v_lshlrev_b32 {v(sU + 4 * t + 1)}, 16, {v(sR + 2 + t)}")
        A(f"v_and_b32 {v(sU + 4 * t + 2)}, 0xffff0000, {v(sR + t)}")
        A(f"v_and_b32 {v(sU + 4 * t + 3)}, 0xffff0000, {v(sR + 2 + t)}")
    for i in range(8): unpack(A, vU + 2 * i, vR + i)
    for t in range(8): A(f"v_pk_mul_f32 {v(kAcc + 2 * t, 2)}, {v(kU + 2 * (t + 3), 2)}, {v(sU, 2)}")
    for i in range(1, 4):
        for t in range(8):
            A(f"v_pk_fma_f32 {v(kAcc + 2 * t, 2)}, {v(kU + 2 * (t + 3 - i), 2)}, {v(sU + 2 * i, 2)}, {v(kAcc + 2 * t, 2)}")
    for t in range(8): A(f"v_pk_mul_f32 {v(kAcc + 2 * t, 2)}, {v(kAcc + 2 * t, 2)}, {v(vU + 2 * t, 2)}")
    for c in range(2):
        for d in range(4):
            A(f"v_cvt_pk_bf16_f32 {v(kP + 4 * c + d)}, {v(kAcc + 2 * (7 - 2 * d) + c)}, {v(kAcc + 2 * (6 - 2 * d) + c)}")
    A(f"s_mov_b32 {sOFF}, {CP}")
    A(f"buffer_store_dwordx4 {v(kP, 4)}, {v(kO)}, {WS}, 0 offen sc1", tag="kvst")
    A(f"buffer_store_dwordx4 {v(kP + 4, 4)}, {v(kO)}, {WS}, {sOFF} offen sc1", tag="kvst")
    A(f"buffer_load_dword {v(vPOLL)}, {v(vZ)}, {DBG}, 0 offen sc1", tag="init")
    A.ext(w3_issue(0, 7, sL7, R2))

    sF_, sE, sG, sS, sA0, sA1, sAE, sONE = WK, WK + 56, WK + 60, WK + 64, WK + 68, WK + 69, WK + 70, WK + 72
    n16, q4 = WK + 76, WK + 77
    A(f"""
    v_and_b32 {v(n16)}, 15, {v(vL)}
    v_lshrrev_b32 {v(q4)}, 4, {v(vL)}
    v_and_b32 {v(sA0)}, 6, {v(n16)}
    v_xor_b32 {v(sA0)}, {v(q4)}, {v(sA0)}
    v_lshlrev_b32 {v(sA0)}, 4, {v(sA0)}
    v_mul_u32_u24 {v(sA1)}, 896, {v(n16)}
    v_add3_u32 {v(sA0)}, {v(sA0)}, {v(sA1)}, {sT3}
    v_xor_b32 {v(sA1)}, 64, {v(sA0)}
    v_add_u32 {v(sAE)}, {sT3}, {v(vL16)}
    """)
    for i in range(4): A(f"v_mov_b32 {v(sONE + i)}, {sONES}")
    A.wvm("x")
    stamp(A, 4)
    A(f"ds_read_b128 {v(sE, 4)}, {v(sAE)} offset:{R0 + 16 * 896}", tag="se")
    for i in range(14):
        A(f"ds_read_b128 {v(sF_ + 4 * i, 4)}, {v((sA0, sA1)[i & 1])} offset:{R0 + 128 * (i >> 1)}", tag=f"sf{i}")
    eS, eQ, eT = WK + 78, WK + 79, WK + 80
    A(f"v_mov_b32 {v(eS)}, 0")
    A(f"v_mov_b32 {v(eQ)}, 0")
    A.wds("se")
    for i in range(4):
        A(f"v_dot2c_f32_bf16 {v(eS)}, {sONES}, {v(sE + i)}")
        A(f"v_dot2c_f32_bf16 {v(eQ)}, {v(sE + i)}, {v(sE + i)}")
    M = Asm()
    for i in range(14):
        M.wds(f"sf{i}")
        M(f"v_mfma_f32_16x16x32_bf16 {v(sG, 4)}, {v(sF_ + 4 * i, 4)}, {v(sF_ + 4 * i, 4)}, {v(sG, 4) if i else 0}")
        M(f"v_mfma_f32_16x16x32_bf16 {v(sS, 4)}, {v(sONE, 4)}, {v(sF_ + 4 * i, 4)}, {v(sS, 4) if i else 0}")
    B = Asm()
    B(f"""
    v_cmp_gt_u32 vcc, 56, {v(vL)}
    v_cndmask_b32 {v(eS)}, 0, {v(eS)}, vcc
    v_cndmask_b32 {v(eQ)}, 0, {v(eQ)}, vcc
    v_permlane32_swap_b32 {v(eS)}, {v(eQ)}
    v_add_f32 {v(eS)}, {v(eS)}, {v(eQ)}
    v_add_f32_dpp {v(eS)}, {v(eS)}, {v(eS)} quad_perm:[1,0,3,2] row_mask:0xf bank_mask:0xf
    v_add_f32_dpp {v(eS)}, {v(eS)}, {v(eS)} quad_perm:[2,3,0,1] row_mask:0xf bank_mask:0xf
    v_add_f32_dpp {v(eS)}, {v(eS)}, {v(eS)} row_half_mirror row_mask:0xf bank_mask:0xf
    v_add_f32_dpp {v(eS)}, {v(eS)}, {v(eS)} row_mirror row_mask:0xf bank_mask:0xf
    v_mov_b32 {v(eQ)}, {v(eS)}
    v_permlane16_swap_b32 {v(eS)}, {v(eQ)}
    v_add_f32 {v(eS)}, {v(eS)}, {v(eQ)}
    v_mov_b32 {v(eQ)}, {v(eS)}
    v_permlane32_swap_b32 {v(eS)}, {v(eQ)}
    """)
    A.ext(weave(M, B, start=2))
    K4 = WK + 84
    A(f"""
    v_and_b32 {v(eT)}, 3, {v(vL)}
    v_cmp_eq_u32 vcc, 1, {v(eT)}
    v_cndmask_b32 {v(sG)}, {v(sG)}, {v(sG + 1)}, vcc
    v_cmp_eq_u32 vcc, 2, {v(eT)}
    v_cndmask_b32 {v(sG)}, {v(sG)}, {v(sG + 2)}, vcc
    v_cmp_eq_u32 vcc, 3, {v(eT)}
    v_cndmask_b32 {v(sG)}, {v(sG)}, {v(sG + 3)}, vcc
    v_cmp_eq_u32 vcc, 16, {v(vL)}
    v_cndmask_b32 {v(sG)}, {v(sG)}, {v(eQ)}, vcc
    v_cndmask_b32 {v(sS)}, {v(sS)}, {v(eS)}, vcc
    v_cndmask_b32 {v(eT)}, {v(n16)}, {v(vL)}, vcc
    v_mul_f32 {v(K4)}, {f2u(-1.0 / D)}, {v(sS)}
    v_mul_f32 {v(sG)}, {f2u(1.0 / D)}, {v(sG)}
    v_fma_f32 {v(sG)}, -{v(K4)}, {v(K4)}, {v(sG)}
    v_max_f32 {v(sG)}, 0, {v(sG)}
    v_add_f32 {v(sS)}, {f2u(EPS)}, {v(sG)}
    v_rsq_f32 {v(K4 + 4)}, {v(sS)}
    s_mul_i32 {sT0}, {sW}, {17 * 32}
    v_lshl_add_u32 {v(eT)}, {v(eT)}, 5, {sT0}
    v_mul_f32 {v(sG)}, {v(sG)}, {v(K4 + 4)}
    v_fmaak_f32 {v(sG)}, {v(sG)}, {v(K4 + 4)}, {f2u(EPS)}
    v_rsq_f32 {v(sG)}, {v(sG)}
    v_add_u32 {v(eT)}, {ST1}, {v(eT)}
    v_mul_f32 {v(sG)}, {v(sG)}, {v(K4 + 4)}
    v_rcp_f32 {v(K4 + 3)}, {v(sG)}
    v_mul_f32 {v(K4 + 1)}, {f2u(C0)}, {v(sG)}
    v_mul_f32 {v(sS)}, {v(sG)}, {v(sG)}
    v_mul_f32 {v(sS)}, {f2u(0.044715)}, {v(sS)}
    v_mul_f32 {v(K4 + 2)}, {v(K4 + 1)}, {v(sS)}
    s_mov_b32 exec_lo, 0x00f1000f
    s_mov_b32 exec_hi, 0xf0000f00
    """)
    A(f"ds_write_b128 {v(eT)}, {v(K4, 4)}", tag="stw")
    A(f"ds_write_b32 {v(eT)}, {v(K4 + 4)} offset:16", tag="stw")
    A("s_mov_b64 exec, -1")
    gA = WK + 96
    gC, gX0, gX1, gXS, gW, gH = WK + 110, WK + 111, WK + 112, WK + 113, WK + 114, WK + 115
    A(f"""
    s_lshl_b32 {sT0}, {sJ}, 2
    s_add_u32 {sT0}, {sT0}, {sW}
    s_mul_i32 {sT1}, {sT0}, 37
    s_lshr_b32 {sT1}, {sT1}, 8                 ; group
    s_lshl_b32 {sT1}, {sT1}, 2
    s_lshr_b32 {sT1}, 0x4031, {sT1}
    s_and_b32 {sT1}, {sT1}, 15
    v_add_u32 {v(gC)}, {sT1}, {v(n16)}
    v_mul_u32_u24 {v(gX0)}, 7, {v(gC)}
    v_lshlrev_b32 {v(gC)}, 5, {v(gC)}
    v_add_u32 {v(gC)}, {ST1}, {v(gC)}
    """)
    for i in range(7):
        A(f"""
        v_add_u32 {v(gA + 2 * i)}, {i}, {v(gX0)}
        v_and_b32 {v(gA + 2 * i + 1)}, 6, {v(gA + 2 * i)}
        v_xor_b32 {v(gA + 2 * i + 1)}, {v(q4)}, {v(gA + 2 * i + 1)}
        v_lshlrev_b32 {v(gA + 2 * i + 1)}, 4, {v(gA + 2 * i + 1)}
        v_lshl_add_u32 {v(gA + 2 * i)}, {v(gA + 2 * i)}, 7, {v(gA + 2 * i + 1)}
        v_xor_b32 {v(gA + 2 * i + 1)}, 64, {v(gA + 2 * i)}
        """)
    A(f"""
    s_mul_i32 {sT1}, {sRB}, {2 * U}
    s_lshl_b32 {sT0}, {sT0}, 10
    s_add_u32 {sT0}, {sT0}, {sT1}
    s_add_u32 {sT0}, {sT0}, {WS_H}
    v_and_b32 {v(gH)}, 16, {v(vL)}
    v_lshlrev_b32 {v(gH)}, 5, {v(gH)}
    v_lshrrev_b32 {v(gW)}, 5, {v(vL)}
    v_lshl_add_u32 {v(gW)}, {v(gW)}, 4, {v(n16)}
    v_lshl_add_u32 {v(gH)}, {v(gW)}, 4, {v(gH)}
    v_add_u32 {v(gH)}, {sT0}, {v(gH)}
    v_bfe_u32 {v(gX1)}, {v(vL)}, 2, 2
    v_lshl_add_u32 {v(gW)}, {v(q4)}, 3, {v(gX1)}
    v_bfe_u32 {v(gX1)}, {v(vL)}, 3, 2
    v_xor_b32 {v(gX1)}, {sW}, {v(gX1)}
    v_lshlrev_b32 {v(gX1)}, 5, {v(gX1)}
    v_lshl_add_u32 {v(gW)}, {v(gW)}, 7, {v(gX1)}
    v_and_b32 {v(gX1)}, 3, {v(vL)}
    v_lshl_add_u32 {v(gW)}, {v(gX1)}, 3, {v(gW)}
    v_add_u32 {v(gW)}, {R1}, {v(gW)}
    s_lshr_b32 {sT0}, {sW}, 1
    s_lshl_b32 {sT0}, {sT0}, 5
    s_add_u32 {sT0}, {sT0}, 2
    v_and_b32 {v(gXS)}, 31, {v(vL)}
    v_add_u32 {v(gXS)}, {sT0}, {v(gXS)}
    v_mad_u32_u24 {v(gX0)}, {v(gXS)}, 7, {sJ}
    v_and_b32 {v(gX1)}, 6, {v(gX0)}
    s_and_b32 {sT0}, {sW}, 1
    s_lshl_b32 {sT0}, {sT0}, 2
    v_xor_b32 {v(gX1)}, {sT0}, {v(gX1)}
    v_lshlrev_b32 {v(gX1)}, 4, {v(gX1)}
    v_lshl_add_u32 {v(gX0)}, {v(gX0)}, 7, {v(gX1)}
    v_lshrrev_b32 {v(gX1)}, 5, {v(vL)}
    v_lshl_add_u32 {v(gX0)}, {v(gX1)}, 3, {v(gX0)}
    v_xor_b32 {v(gX1)}, 32, {v(gX0)}
    v_lshlrev_b32 {v(gXS)}, 5, {v(gXS)}
    v_add_u32 {v(gXS)}, {ST1}, {v(gXS)}
    """)
    check_or_spin(A, "init", v(vZ), DBG, v(vPOLL), 1)
    A.wds("stw")
    A("s_barrier")
    stamp(A, 5)
    setflag(A, v(vFLAG), v(vT), 1)
    for kb in range(14):
        for e in range(2):
            A(f"ds_read_b64_tr_b16 {a(AW1 + 4 * kb + 2 * e, 2)}, {v(gW)} offset:{4096 * kb + 512 * e}", tag="w1t")
    gB, NB1 = WK, 8
    gAcc, gCS, gK, gXR, gXM = WK + 32, WK + 48, WK + 52, WK + 76, WK + 84
    for aa in range(4):
        A(f"ds_read_b64 {v(gXR + 2 * aa, 2)}, {v((gX0, gX1)[aa >> 1])} offset:{R0 + 16 * (aa & 1)}", tag="xr")
    A(f"ds_read_b32 {v(gXM)}, {v(gXS)}", tag="xr")
    A(f"ds_read_b32 {v(gXM + 1)}, {v(gXS)} offset:16", tag="xr")
    order = [(kb, tt) for kb in range(14) for tt in range(4)]

    def g1read(B, i):
        kb, tt = order[i]
        B(f"ds_read_b128 {v(gB + 4 * (i % NB1), 4)}, {v(gA + kb)} offset:{R0 + 14336 * tt}", tag=f"g1b{i}")

    A.wds("w1t")
    for i in range(NB1): g1read(A, i)
    A("s_barrier")
    M = Asm()
    for i, (kb, tt) in enumerate(order):
        if tt == 0:
            M(f"v_mfma_f32_16x16x32_bf16 {v(gCS, 4)}, {a(AW1 + 4 * kb, 4)}, {v(sONE, 4)}, {v(gCS, 4) if kb else 0}")
        M.wds(f"g1b{i}")
        M(f"v_mfma_f32_16x16x32_bf16 {v(gAcc + 4 * tt, 4)}, {a(AW1 + 4 * kb, 4)}, {v(gB + 4 * (i % NB1), 4)}, {v(gAcc + 4 * tt, 4) if kb else 0}")
        if i + NB1 < 56: g1read(M, i + NB1)
    B = Asm()
    B(f"s_mul_i32 {sT0}, {sW}, {112 * 896}")
    B(f"v_add_u32 {v(w1A)}, {sT0}, {v(vW24)}")
    B.ext(dma(v(w1A), W2, 0, 7168, 14, sL14, R1, "w2"))
    B(f"s_mul_i32 {sT0}, {sW}, {448 * 896}")
    B(f"v_add_u32 {v(vW24)}, {sT0}, {v(vW24)}")
    A.ext(weave(M, B, start=1, end=60))
    for tt in range(4):
        A(f"ds_read_b128 {v(gK + 4 * tt, 4)}, {v(gC)} offset:{512 * tt}", tag="g1k")
    stamp(A, 6)
    A.ext(w3_take(0, 7, sL7, R2))
    gT = WK + 88
    A.wds("xr")
    for i in range(8):
        unpack(A, gT, gXR + i)
        for h in range(2):
            A(f"v_accvgpr_write_b32 {a(ABASE + 2 * i + h)}, {v(gT + h)}")
            A(f"v_add_f32 {v(gT + 2 + h)}, {v(gXM)}, {v(gT + h)}")
        for h in range(2):
            A(f"v_mul_f32 {v(gT + 2 + h)}, {v(gXM + 1)}, {v(gT + 2 + h)}")
        for h in range(2):
            A(f"v_accvgpr_write_b32 {a(AXN + 2 * i + h)}, {v(gT + 2 + h)}")
    A.wds("*")
    A("s_barrier")
    A.ext(w3_issue(7, 7, sL7, R2))
    gP = WK + 8
    A.ext(gelu_pk(gAcc, lambda i: gCS + (i & 3), lambda i: gK + (i & ~3), gT, gP, 16))
    for th in range(2):
        for d in range(2):
            A(f"v_permlane32_swap_b32 {v(gP + 4 * th + d)}, {v(gP + 4 * th + 2 + d)}")
    A(f"s_mov_b32 {sOFF}, {U}")
    A(f"buffer_store_dwordx4 {v(gP, 4)}, {v(gH)}, {WS}, 0 offen sc1", tag="hst")
    A(f"buffer_store_dwordx4 {v(gP + 4, 4)}, {v(gH)}, {WS}, {sOFF} offen sc1", tag="hst")
    stamp(A, 7)
    A.wvm("hst")
    A("s_barrier")
    setflag(A, v(vFLAG), v(vT), 2)
    stamp(A, 8)
    A.ext(w3_issue(14, 14, sL15, R0))
    A(f"v_add_u32 {v(vT)}, {R1}, {v(vTR32)}")
    for s in range(28):
        for e in range(2):
            A(f"ds_read_b64_tr_b16 {a(AW2 + 4 * s + 2 * e, 2)}, {v(vT)} offset:{2048 * s + 1024 * e}", tag="w2t")
    hA, hB = WK + 100, WK + 101
    A(f"""
    v_min_u32 {v(vPOLL)}, 6, {v(vL)}
    s_mul_i32 {sT0}, {sRB}, 7
    v_add_u32 {v(vPOLL)}, {sT0}, {v(vPOLL)}
    v_lshlrev_b32 {v(vPOLL)}, 7, {v(vPOLL)}
    s_lshr_b32 {sT0}, {sW}, 1
    s_mul_i32 {sT0}, {sT0}, {U}                ; th*U
    s_and_b32 {sT1}, {sW}, 1
    s_mul_i32 {sT1}, {sT1}, 7168
    s_add_u32 {sT3}, {sT0}, {sT1}
    s_mul_i32 {sT2}, {sRB}, {2 * U}
    s_add_u32 {sT2}, {sT2}, {sT3}
    v_add_u32 {v(hA)}, {sT2}, {v(vL16)}
    s_add_u32 {sT0}, {sT0}, {R1}
    v_add_u32 {v(hB)}, {sT0}, {v(vL16)}
    """)
    A.wds("*")
    A("s_barrier")
    spin(A, v(vPOLL), WS, v(vT), 2)
    stamp(A, 9)
    A.ext(dma(v(hA), WS, WS_H, 1024, 7, sT3, R1, "ha", sc1=True))
    A.ext(dma(v(hA), WS, WS_H + 14336, 1024, 7, sT3, R1 + 14336, "hb", sc1=True))
    A.ext(w3_take(7, 7, sL7, R2))
    A.ext(w3_take(14, 14, sL15, R0))
    A.wds("*")
    A.wvm("ha")
    A("s_barrier")
    stamp(A, 10)
    NB2 = 6
    g2B, g2Acc = WK, WK + 32

    def g2read(B, s):
        B(f"ds_read_b128 {v(g2B + 4 * (s % NB2), 4)}, {v(hB)} offset:{1024 * s}", tag=f"g2b{s}")

    for s in range(NB2): g2read(A, s)
    M = Asm()
    for s in range(28):
        M.wds(f"g2b{s}")
        M(f"v_mfma_f32_32x32x16_bf16 {v(g2Acc, 16)}, {a(AW2 + 4 * s, 4)}, {v(g2B + 4 * (s % NB2), 4)}, {v(g2Acc, 16) if s else 0}")
        if s + NB2 == 14:
            M.wvm("hb")
            M("s_barrier")
        if s + NB2 < 28: g2read(M, s + NB2)
    B = Asm()
    B.ext(w4_issue(0, 15, sL15, R0))
    A.ext(weave(M, B, start=9))
    A.ext(w4_issue(15, 7, sL7, R2))
    x1T, x1P, x1S, x1Q, x1A, x1B = WK + 48, WK + 64, WK + 72, WK + 73, WK + 74, WK + 75
    A(f"""
    s_lshr_b32 {sT0}, {sW}, 1
    s_lshl_b32 {sT1}, {sRB}, 1
    s_add_u32 {sT0}, {sT0}, {sT1}
    s_and_b32 {sT1}, {sW}, 1
    s_lshl_b32 {sT2}, {sJ}, 1
    s_add_u32 {sT1}, {sT1}, {sT2}
    s_mul_i32 {sT2}, {sT0}, {U}
    s_lshl_b32 {sT3}, {sT1}, 11
    s_add_u32 {sT2}, {sT2}, {sT3}
    s_add_u32 {sT2}, {sT2}, {WS_X1}
    v_add_u32 {v(x1A)}, {sT2}, {v(vL16)}
    s_mul_i32 {sT2}, {sT0}, 3584
    s_lshl_b32 {sT3}, {sT1}, 8
    s_add_u32 {sT2}, {sT2}, {sT3}
    s_add_u32 {sT2}, {sT2}, {WS_XS}
    v_lshl_add_u32 {v(x1B)}, {v(vL)}, 2, {sT2}
    v_mov_b32 {v(x1S)}, 0
    v_mov_b32 {v(x1Q)}, 0
    """)
    for i in range(16): A(f"v_accvgpr_read_b32 {v(x1T + i)}, {a(AXN + i)}")
    for i in range(0, 16, 2): A(f"v_pk_add_f32 {v(g2Acc + i, 2)}, {v(g2Acc + i, 2)}, {v(x1T + i, 2)}")
    for i in range(8): A(f"v_cvt_pk_bf16_f32 {v(x1P + i)}, {v(g2Acc + 2 * i)}, {v(g2Acc + 2 * i + 1)}")
    A(f"buffer_store_dwordx4 {v(x1P, 4)}, {v(x1A)}, {WS}, 0 offen sc1", tag="x1st")
    A(f"buffer_store_dwordx4 {v(x1P + 4, 4)}, {v(x1A)}, {WS}, 0 offen offset:1024 sc1", tag="x1st")
    for i in range(8):
        A(f"v_dot2c_f32_bf16 {v(x1S)}, {sONES}, {v(x1P + i)}")
        A(f"v_dot2c_f32_bf16 {v(x1Q)}, {v(x1P + i)}, {v(x1P + i)}")
    A(f"v_permlane32_swap_b32 {v(x1S)}, {v(x1Q)}")
    A(f"v_add_f32 {v(x1S)}, {v(x1S)}, {v(x1Q)}")
    A(f"buffer_store_dword {v(x1S)}, {v(x1B)}, {WS}, 0 offen sc1", tag="x1st")
    stamp(A, 11)
    for i in range(16): A(f"v_accvgpr_read_b32 {v(x1T + i)}, {a(ABASE + i)}")
    for i in range(0, 16, 2): A(f"v_pk_add_f32 {v(g2Acc + i, 2)}, {v(g2Acc + i, 2)}, {v(x1T + i, 2)}")
    for i in range(16): A(f"v_accvgpr_write_b32 {a(ABASE + i)}, {v(g2Acc + i)}")
    A.wvm("x1st")
    A("s_barrier")
    setflag(A, v(vFLAG), v(vT), 3)
    stamp(A, 12)
    NB3 = 6
    cS, cAcc, cB, cK, cT, cP, cX = WK, WK + 16, WK + 48, WK + 72, WK + 80, WK + 88, WK + 96
    cA, cRd0, cRd1, cXA, cKA, cSt = WK + 112, WK + 113, WK + 114, WK + 115, WK + 116, WK + 117
    for i in range(4): A(f"v_mov_b32 {v(cB + i)}, {sONES}")
    M = Asm()
    for s in range(28):
        M(f"v_mfma_f32_32x32x16_bf16 {v(cS, 16)}, {v(VW3 + 4 * s, 4)}, {v(cB, 4)}, {v(cS, 16) if s else 0}")
    B = Asm()
    B.ext(w4_take(0, 15, sL15, R0))
    B.ext(w4_take(15, 7, sL7, R2))
    B(f"""
    v_min_u32 {v(vPOLL)}, 13, {v(vL)}
    s_mul_i32 {sT0}, {sC}, 14
    v_add_u32 {v(vPOLL)}, {sT0}, {v(vPOLL)}
    v_lshlrev_b32 {v(vPOLL)}, 7, {v(vPOLL)}
    s_mul_i32 {sT0}, {sC}, {4 * U}
    s_add_u32 {sT0}, {sT0}, {sL7}
    v_add_u32 {v(cA)}, {sT0}, {v(vL16)}
    v_add_u32 {v(cRd0)}, {R1}, {v(vL16)}
    v_add_u32 {v(cRd1)}, {R0}, {v(vL16)}
    s_lshl_b32 {sT0}, {sC}, 2
    s_add_u32 {sT0}, {sT0}, {sW}
    s_mul_i32 {sT0}, {sT0}, 3584
    s_add_u32 {sT0}, {sT0}, {WS_XS}
    v_lshl_add_u32 {v(cXA)}, {v(vL)}, 2, {sT0}
    v_and_b32 {v(cKA)}, 31, {v(vL)}
    v_lshlrev_b32 {v(cKA)}, 4, {v(cKA)}
    v_add_u32 {v(cKA)}, {ST3}, {v(cKA)}
    s_mul_i32 {sT0}, {sC}, {4 * 4 * U}
    s_lshl_b32 {sT1}, {sF}, 13
    s_add_u32 {sT0}, {sT0}, {sT1}
    s_lshl_b32 {sT1}, {sW}, 11
    s_add_u32 {sT0}, {sT0}, {sT1}
    s_add_u32 {sT0}, {sT0}, {WS_H3}
    v_add_u32 {v(cSt)}, {sT0}, {v(vL16)}
    """)
    A.ext(weave(M, B))
    A.wds("*")
    A("s_barrier")
    spin(A, v(vPOLL), WS, v(vT), 3)
    stamp(A, 13)
    TL = (R1, R1 + U, R0, R0 + U)

    def x1_issue(tt):
        return dma(v(cA), WS, WS_X1 + U * tt, 1024, 7, sL7, TL[tt], f"t{tt}", sc1=True)

    A.ext(x1_issue(0))
    for i in range(14):
        A(f"buffer_load_dword {v(cX + i)}, {v(cXA)}, {WS}, 0 offen offset:{256 * i} sc1", tag="xs")
    A.ext(x1_issue(1))
    A.wvm("t0")
    A("s_barrier")
    stamp(A, 14)

    def g3read(B, i):
        tt, s = divmod(i, 28)
        B(f"ds_read_b128 {v(cB + 4 * (i % NB3), 4)}, {v((cRd0, cRd1)[tt >> 1])} offset:{U * (tt & 1) + 1024 * s}", tag=f"g3b{i}")

    def g3store(B, tt):
        B(f"s_mov_b32 {sT1}, {4 * U * tt}")
        B(f"buffer_store_dwordx4 {v(cP, 4)}, {v(cSt)}, {WS}, {sT1} offen sc1", tag="h3st")
        B(f"buffer_store_dwordx4 {v(cP + 4, 4)}, {v(cSt)}, {WS}, {sT1} offen offset:1024 sc1", tag="h3st")

    for i in range(NB3): g3read(A, i)
    for tt in range(4):
        acc = cAcc + 16 * (tt & 1)
        M1, M2 = Asm(), Asm()
        for s in range(28):
            M = M1 if s < 28 - NB3 else M2
            i = 28 * tt + s
            M.wds(f"g3b{i}")
            M(f"v_mfma_f32_32x32x16_bf16 {v(acc, 16)}, {v(VW3 + 4 * s, 4)}, {v(cB + 4 * (i % NB3), 4)}, {v(acc, 16) if s else 0}")
            if s == 28 - NB3:
                if tt < 3:
                    M.wvm(f"t{tt + 1}")
                if tt == 0:
                    M.wds("st3w")
                M("s_barrier")
                M(f"ds_read_b128 {v(cK + 4 * (tt & 1), 4)}, {v(cKA)} offset:{512 * tt}", tag=f"g3k{tt}")
            if i + NB3 < 112: g3read(M, i + NB3)
        B = Asm()
        if tt == 0:
            B.ext(x1_issue(2))
            B.wvm("xs")
            for i in range(7): B(f"v_add_f32 {v(cX + i)}, {v(cX + i)}, {v(cX + 7 + i)}")
            for i in range(3): B(f"v_add_f32 {v(cX + i)}, {v(cX + i)}, {v(cX + 3 + i)}")
            B(f"""
            v_add_f32 {v(cX)}, {v(cX)}, {v(cX + 6)}
            v_add_f32 {v(cX + 1)}, {v(cX + 1)}, {v(cX + 2)}
            v_add_f32 {v(cX)}, {v(cX)}, {v(cX + 1)}
            v_mov_b32 {v(cX + 1)}, {v(cX)}
            s_lshl_b32 {sT0}, {sW}, 9
            v_add_u32 {v(cX + 2)}, {sT0}, {v(cKA)}
            v_permlane32_swap_b32 {v(cX)}, {v(cX + 1)}
            v_mul_f32 {v(cX + 4)}, {f2u(-1.0 / D)}, {v(cX)}
            v_mul_f32 {v(cX + 1)}, {f2u(1.0 / D)}, {v(cX + 1)}
            v_fma_f32 {v(cX + 1)}, -{v(cX + 4)}, {v(cX + 4)}, {v(cX + 1)}
            v_max_f32 {v(cX + 1)}, 0, {v(cX + 1)}
            v_add_f32 {v(cX + 1)}, {f2u(EPS)}, {v(cX + 1)}
            v_rsq_f32 {v(cX)}, {v(cX + 1)}
            v_sqrt_f32 {v(cX + 7)}, {v(cX + 1)}
            v_mul_f32 {v(cX + 5)}, {f2u(C0)}, {v(cX)}
            v_mul_f32 {v(cX)}, {v(cX)}, {v(cX)}
            v_mul_f32 {v(cX)}, {f2u(0.044715)}, {v(cX)}
            v_mul_f32 {v(cX + 6)}, {v(cX + 5)}, {v(cX)}
            """)
            B(f"ds_write_b128 {v(cX + 2)}, {v(cX + 4, 4)}", tag="st3w")
            B.ext(x1_issue(3))
            A.ext(weave(M1, B))
            A.ext(M2)
        else:
            G = Asm()
            G.wds(f"g3k{tt - 1}")
            G.ext(gelu(cAcc + 16 * ((tt - 1) & 1), lambda i: cS + i, cK + 4 * ((tt - 1) & 1), cT, cP, 16))
            g3store(G, tt - 1)
            Dq = Asm()
            if tt == 1:
                Dq.ext(w4_issue(22, 7, sL7, R2))
            Dq.ext(w4_issue(22 + 7 * tt, 7, sL7, TL[tt - 1]))
            MM = Asm()
            MM.ext(M1)
            MM.ext(M2)
            A.ext(weave(weave(MM, G, start=2), Dq, start=0))
    stamp(A, 15)
    A.ext(w4_issue(50, 6, sL7, TL[3]))
    A.wds("g3k3")
    A.ext(gelu_pk(cAcc + 16, lambda i: cS + i, lambda i: cK + 4, cT, cP, 16))
    g3store(A, 3)
    stamp(A, 16)
    A.ext(w4_take(22, 7, sL7, R2))
    for tt in range(3):
        A.ext(w4_take(29 + 7 * tt, 7, sL7, TL[tt]))
    A.wvm("h3st")
    A("s_barrier")
    setflag(A, v(vFLAG), v(vT), 4)
    stamp(A, 17)
    A.ext(w4_take(50, 6, sL7, TL[3]))
    dAcc, dB, NB4 = 16, 80, 42
    dA0, dA1, dY, dYP, dYV = 248, 249, 250, 251, 252
    A(f"""
    s_lshr_b32 {sT0}, {sW}, 1
    s_lshl_b32 {sT1}, {sRB}, 1
    s_add_u32 {sT0}, {sT0}, {sT1}
    s_xor_b32 {sT1}, {sT0}, 1
    s_mul_i32 {sT0}, {sT0}, {4 * U}
    s_mul_i32 {sT1}, {sT1}, {4 * U}
    s_mul_i32 {sT2}, {sW}, {U}
    s_add_u32 {sT2}, {sT2}, {WS_H3}
    s_add_u32 {sT0}, {sT0}, {sT2}
    s_add_u32 {sT1}, {sT1}, {sT2}
    v_add_u32 {v(dA0)}, {sT0}, {v(vL16)}
    v_add_u32 {v(dA1)}, {sT1}, {v(vL16)}
    v_lshrrev_b32 {v(dY)}, 3, {v(vL)}
    v_and_b32 {v(dYP)}, 2, {v(dY)}
    v_lshlrev_b32 {v(dYP)}, 1, {v(dYP)}
    v_and_b32 {v(dYV)}, 7, {v(vL)}
    v_xor_b32 {v(dYP)}, {v(dYP)}, {v(dYV)}
    v_mul_u32_u24 {v(dY)}, {CP}, {v(dY)}
    v_lshl_add_u32 {v(dY)}, {v(dYP)}, 4, {v(dY)}
    s_lshl_b32 {sT0}, {sJ}, 6
    s_lshl_b32 {sT1}, {sW}, 4
    s_add_u32 {sT1}, {sT1}, {sT0}
    s_mul_i32 {sT1}, {sT1}, {CP}
    s_lshl_b32 {sT2}, {sRB}, 7
    s_add_u32 {sT1}, {sT1}, {sT2}
    v_add_u32 {v(dY)}, {sT1}, {v(dY)}
    v_add_u32 {v(dYP)}, {sT0}, {v(vL)}
    v_mul_u32_u24 {v(dYP)}, 4682, {v(dYP)}
    v_lshrrev_b32 {v(dYP)}, 16, {v(dYP)}
    v_add_u32 {v(dYP)}, 224, {v(dYP)}
    v_lshlrev_b32 {v(dYP)}, 7, {v(dYP)}
    s_lshl_b32 {sT3}, {sW}, 11
    """)
    A.wds("*")
    A("s_barrier")
    spin(A, v(vPOLL), WS, v(vT), 4)
    stamp(A, 18)
    cur = [None]

    def g4load(B, i):
        s, b = divmod(i, 2)
        so = 4096 * (s >> 2)
        if so and so != cur[0]:
            B(f"s_mov_b32 {sT2}, {so}")
            cur[0] = so
        B(f"buffer_load_dwordx4 {v(dB + 4 * (i % NB4), 4)}, {v((dA0, dA1)[b])}, {WS}, {sT2 if so else 0} offen offset:{1024 * (s & 3)} sc1", tag=f"g4b{i}")

    PRE = 12
    for i in range(PRE): g4load(A, i)
    nxt = PRE
    for i in range(56):
        s, b = divmod(i, 2)
        A.wvm(f"g4b{i}")
        for sl in range(2):
            acc = dAcc + 16 * (2 * b + sl)
            A(f"v_mfma_f32_32x32x16_bf16 {v(acc, 16)}, {a(8 * s + 4 * sl, 4)}, {v(dB + 4 * (i % NB4), 4)}, {v(acc, 16) if s else 0}")
            if sl == 0 and nxt < 56:
                g4load(A, nxt)
                nxt += 1
                if nxt == 56:
                    A(f"buffer_load_dword {v(dYV)}, {v(dYP)}, {WS}, 0 offen sc1", tag="yf")
    stamp(A, 19)
    check_or_spin(A, "yf", v(dYP), WS, v(dYV), 1)
    A.ext(dma(v(dY), WS, WS_Y, 8 * CP, 2, sT3, YL, "y", sc1=True))
    rA = 80
    for sg in range(1, 4):
        A(f"s_xor_b32 {sT0}, {sW}, {sg}")
        A(f"s_mul_i32 {sT0}, {sT0}, 12288")
        A(f"v_add_u32 {v(rA + sg)}, {sT0}, {v(vL16)}")
    A(f"s_mul_i32 {sT0}, {sW}, 12288")
    A(f"v_add_u32 {v(rA)}, {sT0}, {v(vL16)}")
    for sg in range(1, 4):
        for qd in range(4):
            A(f"ds_write_b128 {v(rA + sg)}, {v(dAcc + 16 * sg + 4 * qd, 4)} offset:{R0 + 4096 * (sg - 1) + 1024 * qd}", tag="rw")
    rXN, rBS, rY, rYA, rO, rP = 96, 112, 128, 84, 85, 144
    for i in range(16): A(f"v_accvgpr_read_b32 {v(rXN + i)}, {a(AXN + i)}")
    for i in range(16): A(f"v_accvgpr_read_b32 {v(rBS + i)}, {a(ABASE + i)}")
    for i in range(0, 16, 2): A(f"v_pk_add_f32 {v(dAcc + i, 2)}, {v(dAcc + i, 2)}, {v(rBS + i, 2)}")
    A(f"""
    s_and_b32 {sT0}, {sW}, 1
    s_lshr_b32 {sT1}, {sW}, 1
    s_xor_b32 {sT2}, {sT0}, {sT1}
    s_lshl_b32 {sT2}, {sT2}, 6
    v_xor_b32 {v(rYA)}, {sT2}, {v(vTR32)}
    s_lshl_b32 {sT2}, {sT0}, 12
    s_add_u32 {sT2}, {sT2}, {YL}
    v_add_u32 {v(rYA)}, {sT2}, {v(rYA)}
    s_lshl_b32 {sT2}, {sRB}, 1
    s_add_u32 {sT1}, {sT1}, {sT2}
    s_mul_i32 {sT1}, {sT1}, {32 * 896}
    s_lshl_b32 {sT0}, {sT0}, 6
    s_add_u32 {sT1}, {sT1}, {sT0}
    s_lshl_b32 {sT0}, {sJ}, 7
    s_add_u32 {sT1}, {sT1}, {sT0}
    v_and_b32 {v(rO)}, 31, {v(vL)}
    v_mul_u32_u24 {v(rO)}, 896, {v(rO)}
    v_lshrrev_b32 {v(vT)}, 5, {v(vL)}
    v_lshl_add_u32 {v(rO)}, {v(vT)}, 4, {v(rO)}
    v_add_u32 {v(rO)}, {sT1}, {v(rO)}
    """)
    A.wds("*")
    A.wvm("y")
    A("s_barrier")
    stamp(A, 20)
    for aa in range(4):
        A(f"ds_read_b64_tr_b16 {v(rBS + 2 * aa, 2)}, {v(rYA)} offset:{1024 * aa}", tag="yr")
    for sg in range(1, 4):
        for qd in range(4):
            A(f"ds_read_b128 {v(dAcc + 16 * sg + 4 * qd, 4)}, {v(rA)} offset:{R0 + 4096 * (sg - 1) + 1024 * qd}", tag=f"rr{sg}")
    A.wds("yr")
    for i in range(8): unpack(A, rY + 2 * i, rBS + i)
    for i in range(0, 16, 2): A(f"v_pk_fma_f32 {v(dAcc + i, 2)}, {v(rXN + i, 2)}, {v(rY + i, 2)}, {v(dAcc + i, 2)}")
    for sg in range(1, 4):
        A.wds(f"rr{sg}")
        for i in range(0, 16, 2): A(f"v_pk_add_f32 {v(dAcc + i, 2)}, {v(dAcc + i, 2)}, {v(dAcc + 16 * sg + i, 2)}")
    for i in range(8): A(f"v_cvt_pk_bf16_f32 {v(rP + i)}, {v(dAcc + 2 * i)}, {v(dAcc + 2 * i + 1)}")
    for p in range(2):
        for d in range(2):
            A(f"v_permlane32_swap_b32 {v(rP + 4 * p + d)}, {v(rP + 4 * p + 2 + d)}")
    for p in range(2):
        A(f"buffer_store_dwordx4 {v(rP + 4 * p, 4)}, {v(rO)}, {OUT}, 0 offen offset:{32 * p}")
    stamp(A, 21)
    stamps_out(A, 22)
    A("s_endpgm")


def conv_path(A):
    vL, vL16, vZ, vT, vT2, vFLAG, vPOLL = 1, 2, 3, 4, 5, 6, 7
    SLOT, HC, UO = 12928, 4160, 8320
    sS, sCH = sRB, sJ
    srd(A, WS, 13, WS_END)
    srd(A, DBG, 12, 256)
    srd(A, SSK, 4, S * D * 2)
    srd(A, SSD, 5, D * 2)
    A(f"""
    s_and_b32 {sS}, s2, 7
    s_lshl_b32 {sS}, {sS}, 2
    s_add_u32 {sS}, {sS}, {sT1}
    s_sub_u32 {sS}, {sS}, 28
    s_add_u32 {sID}, {sS}, 224
    s_lshl_b32 {sT0}, {sID}, 7
    v_mov_b32 {v(vFLAG)}, {sT0}
    v_lshlrev_b32 {v(vL16)}, 4, {v(vL)}
    v_mov_b32 {v(vZ)}, 0
    s_mul_i32 {sL7}, {sW}, {2 * SLOT}
    s_waitcnt lgkmcnt(0)
    """)
    stamp(A, 2)
    E = newlabel("noinit")
    A(f"s_cmp_lg_u32 {sS}, 0")
    A(f"s_cbranch_scc1 {E}")
    A(f"v_lshlrev_b32 {v(vT)}, 7, v0")
    A(f"buffer_store_dword {v(vZ)}, {v(vT)}, {WS}, 0 offen sc1", cond=True)
    A("s_waitcnt vmcnt(0)", cond=True)
    A("s_barrier")
    A(f"v_mov_b32 {v(vT)}, 1")
    A(f"s_cmp_lg_u32 {sW}, 0")
    A(f"s_cbranch_scc1 {E}")
    A("s_mov_b64 exec, 1")
    A(f"buffer_store_dword {v(vT)}, {v(vZ)}, {DBG}, 0 offen sc1", cond=True)
    A("s_mov_b64 exec, -1")
    A.label(E)
    vH, vUa, vY, vD, vH0 = 8, 12, 16, 20, 24
    m16, q4 = 28, 29
    A(f"""
    v_and_b32 {v(m16)}, 15, {v(vL)}
    v_lshrrev_b32 {v(q4)}, 4, {v(vL)}
    v_and_b32 {v(vT)}, 1, {v(q4)}
    v_lshlrev_b32 {v(vT)}, 9, {v(vT)}
    v_lshl_add_u32 {v(vT)}, {v(m16)}, 5, {v(vT)}
    v_lshrrev_b32 {v(vT2)}, 1, {v(q4)}
    v_lshl_add_u32 {v(vT)}, {v(vT2)}, 4, {v(vT)}
    """)
    for r in range(4):
        A(f"s_mul_i32 {sCH}, {sS}, 14")
        if r < 3:
            A(f"s_add_u32 {sCH}, {sCH}, {sW}")
        else:
            A(f"s_lshr_b32 {sT0}, {sW}, 1")
            A(f"s_add_u32 {sCH}, {sCH}, {sT0}")
        A(f"""
        s_add_u32 {sCH}, {sCH}, {4 * r}
        s_lshl_b32 {sT0}, {sCH}, 12
        v_add_u32 {v(vH + r)}, {sT0}, {v(vL16)}
        s_mul_i32 {sT2}, {sCH}, {CP}
        v_add_u32 {v(vUa + r)}, {sT2}, {v(vL16)}
        s_add_u32 {sT2}, {sT2}, {WS_Y}
        v_add_u32 {v(vY + r)}, {sT2}, {v(vT)}
        s_lshl_b32 {sT2}, {sCH}, 1
        """)
        A(f"buffer_load_ushort {v(vH0 + r)}, {v(vZ)}, {SSK}, {sT0} offen", tag="sc")
        A(f"buffer_load_ushort {v(vD + r)}, {v(vZ)}, {SSD}, {sT2} offen", tag="sc")

    def h_issue(r):
        B = Asm()
        o = SLOT * (r & 1)
        B.ext(dma(v(vH + r), SSK, 0, 1024, 4, sL7, o + 32, f"h{r}"))
        B.ext(dma(v(vH + r), SSK, 2, 1024, 4, sL7, o + HC + 32, f"h{r}"))
        return B

    def u_issue(r):
        return dma(v(vUa + r), WS, WS_KVT, 1024, 4, sL7, SLOT * (r & 1) + UO, f"u{r}", sc1=True)

    A.ext(h_issue(0))
    A.ext(h_issue(1))
    aA, aB, mk, aP, zz = 32, 40, 44, 48, 52
    A(f"""
    v_add_u32 {v(vT)}, 1, {v(m16)}
    v_and_b32 {v(vT2)}, 1, {v(vT)}
    v_mul_u32_u24 {v(vT2)}, {HC}, {v(vT2)}
    v_and_b32 {v(vT)}, 30, {v(vT)}
    v_lshl_add_u32 {v(vT)}, {v(q4)}, 3, {v(vT)}
    v_lshl_add_u32 {v(vT)}, {v(vT)}, 1, {v(vT2)}
    v_add_u32 {v(aA)}, {sL7}, {v(vT)}
    """)
    for i in range(1, 8):
        A(f"v_add_u32 {v(aA + i)}, {1024 * (i & 3) + SLOT * (i >> 2)}, {v(aA)}")
    A(f"""
    v_lshlrev_b32 {v(vT)}, 4, {v(q4)}
    v_lshlrev_b32 {v(vT2)}, 5, {v(m16)}
    v_sub_u32 {v(vT)}, {v(vT)}, {v(vT2)}
    s_add_u32 {sT0}, {sL7}, {UO + 480}
    v_add_u32 {v(aB)}, {sT0}, {v(vT)}
    ; e* = 15 - m - 8q
    v_lshl_add_u32 {v(vT)}, {v(q4)}, 3, {v(m16)}
    v_sub_u32 {v(vT)}, 15, {v(vT)}
    v_mov_b32 {v(zz)}, 0xffff
    v_mov_b32 {v(zz + 1)}, 0xffff0000
    """)
    for d in range(4):
        A(f"v_cmp_eq_u32 vcc, {2 * d}, {v(vT)}")
        A(f"v_cndmask_b32 {v(mk + d)}, 0, {v(zz)}, vcc")
        A(f"v_cmp_eq_u32 vcc, {2 * d + 1}, {v(vT)}")
        A(f"v_cndmask_b32 {v(mk + d)}, {v(mk + d)}, {v(zz + 1)}, vcc")
    A(f"""
    v_mov_b32 {v(zz)}, 0
    v_mov_b32 {v(zz + 1)}, 0
    v_lshl_add_u32 {v(vT)}, {v(vL)}, 3, {sL7}
    """)
    for b in range(2):
        A(f"ds_write_b64 {v(vT)}, {v(zz, 2)} offset:{SLOT * b + UO + 4096}", tag="z")
    A(f"""
    v_bfe_u32 {v(vT)}, {v(vL)}, 3, 1
    v_mul_u32_u24 {v(vT)}, {HC}, {v(vT)}
    v_and_b32 {v(vT2)}, 7, {v(vL)}
    v_lshl_add_u32 {v(vT)}, {v(vT2)}, 2, {v(vT)}
    v_add_u32 {v(aP)}, {sL7}, {v(vT)}
    s_mul_i32 {sT0}, {sS}, 14
    s_add_u32 {sT2}, {sT0}, 13
    s_lshr_b32 {sT0}, {sT0}, 6
    s_lshr_b32 {sT2}, {sT2}, 6
    v_mov_b32 {v(vT)}, {sT0}
    v_mov_b32 {v(vT2)}, {sT2}
    v_cmp_gt_u32 vcc, 32, {v(vL)}
    v_cndmask_b32 {v(vT)}, {v(vT2)}, {v(vT)}, vcc
    v_and_b32 {v(vT2)}, 31, {v(vL)}
    v_mad_u32_u24 {v(vPOLL)}, {v(vT2)}, 7, {v(vT)}
    v_lshlrev_b32 {v(vPOLL)}, 7, {v(vPOLL)}
    """)
    A.wvm("sc")
    A(f"v_cmp_eq_u32 vcc, 15, {v(m16)}")
    for r in range(4):
        A(f"v_lshlrev_b32 {v(vH0 + r)}, 16, {v(vH0 + r)}")
        A(f"v_cndmask_b32 {v(vH0 + r)}, 0, {v(vH0 + r)}, vcc")
        A(f"v_lshl_or_b32 {v(vD + r)}, {v(vD + r)}, 16, {v(vD + r)}")
    A(f"""
    s_and_b32 {sT0}, {sW}, 1
    s_sub_u32 {sT2}, {sT0}, 1
    v_and_b32 {v(vD + 3)}, {sT2}, {v(vD + 3)}
    s_lshl_b32 {sL14}, {sT0}, 8
    """)

    def prefix(B, r):
        B(f"ds_write_b32 {v(aP)}, {v(vH0 + r)} offset:{SLOT * (r & 1)}", tag="z")

    prefix(A, 0)
    prefix(A, 1)
    spin(A, v(vZ), DBG, v(vT), 1)
    spin(A, v(vPOLL), WS, v(vT), 1)
    stamp(A, 3)
    A.ext(u_issue(0))
    A.ext(u_issue(1))
    FA, FB, ACC, AD, PK = 64, 128, 192, 56, 224
    steps = [(r, p) for r in range(4) for p in range(8 if r < 3 else 4)]

    def frags(n):
        r, p = steps[n]
        B = Asm()
        if p == 0:
            B.wvm(f"h{r}", f"u{r}")
            if r == 3:
                for i in range(4): B(f"v_add_u32 {v(aA + 4 + i)}, {sL14}, {v(aA + 4 + i)}")
                B(f"v_add_u32 {v(aB)}, {sL14}, {v(aB)}")
        fa, fb = FA + 32 * (n & 1), FB + 32 * (n & 1)
        for k in range(8):
            B(f"ds_read_b128 {v(fb + 4 * k, 4)}, {v(aB)} offset:{SLOT * (r & 1) + 512 * (7 - k) + 64 * p}", tag=f"f{n}")
            for e in range(2):
                o = 128 * (k & 1) + 16 * p + 2 * e
                B(f"ds_read2_b32 {v(fa + 4 * k + 2 * e, 2)}, {v(aA + 4 * (r & 1) + (k >> 1))} offset0:{o} offset1:{o + 1}", tag=f"f{n}")
        return B

    def finish(B, r):
        for c in range(8):
            for d in range(2):
                B(f"v_cvt_pk_bf16_f32 {v(PK + 2 * c + d)}, {v(ACC + 4 * c + 2 * d)}, {v(ACC + 4 * c + 2 * d + 1)}")
        for c in range(0, 8, 2):
            for d in range(2):
                B(f"v_permlane16_swap_b32 {v(PK + 2 * c + d)}, {v(PK + 2 * c + 2 + d)}")
        for c in range(0, 8, 2):
            B(f"buffer_store_dwordx4 {v(PK + 2 * c, 4)}, {v(vY + r)}, {WS}, 0 offen offset:{512 * c} sc1", tag="yst", cond=(r == 3))

    A.wds("*")
    A.ext(frags(0))
    for n, (r, p) in enumerate(steps):
        fa, fb = FA + 32 * (n & 1), FB + 32 * (n & 1)
        M = Asm()
        if p == 0:
            for d in range(4): A(f"v_and_b32 {v(AD + d)}, {v(vD + r)}, {v(mk + d)}")
        A.wds(f"f{n}")
        if p == 0:
            stamp(A, 4 + r)
            for c in range(8):
                M(f"v_mfma_f32_16x16x32_bf16 {v(ACC + 4 * c, 4)}, {v(AD, 4)}, {v(fb + 4 * c, 4)}, 0")
        for k in range(8):
            for c in range(k, 8):
                M(f"v_mfma_f32_16x16x32_bf16 {v(ACC + 4 * c, 4)}, {v(fa + 4 * k, 4)}, {v(fb + 4 * (c - k), 4)}, {v(ACC + 4 * c, 4)}")
        B = Asm()
        if n + 1 < len(steps):
            B.ext(frags(n + 1))
        if p == 0 and 1 <= r <= 2:
            prefix(B, r + 1)
            B.ext(h_issue(r + 1))
            B.ext(u_issue(r + 1))
        A.ext(weave(M, B, end=-4) if B.L else M)
        if p == 7:
            finish(A, r)
    E1, E2 = newlabel("even"), newlabel("join")
    A(f"""
    s_lshr_b32 {sT0}, {sW}, 1
    s_lshl_b32 {sT0}, {sT0}, 13
    s_add_u32 {sT0}, {sT0}, {8 * SLOT}
    v_add_u32 {v(vT)}, {sT0}, {v(vL16)}
    s_and_b32 {sT0}, {sW}, 1
    s_nop 7
    s_cbranch_scc0 {E1}
    """)
    for c in range(8):
        A(f"ds_write_b128 {v(vT)}, {v(ACC + 4 * c, 4)} offset:{1024 * c}", cond=True)
    A("s_waitcnt lgkmcnt(0)")
    A("s_barrier")
    A(f"s_branch {E2}")
    A.label(E1)
    A("s_barrier")
    for c in range(8):
        A(f"ds_read_b128 {v(FA + 4 * c, 4)}, {v(vT)} offset:{1024 * c}", cond=True)
    A("s_waitcnt lgkmcnt(0)")
    for i in range(0, 32, 2): A(f"v_pk_add_f32 {v(ACC + i, 2)}, {v(ACC + i, 2)}, {v(FA + i, 2)}")
    finish(A, 3)
    A.label(E2)
    stamp(A, 8)
    A("s_waitcnt vmcnt(0)")
    A("s_barrier")
    setflag(A, v(vFLAG), v(vT), 1)
    stamp(A, 9)
    stamps_out(A, 10)
    A("s_endpgm")


def build():
    A = Asm()
    A("s_cmp_ge_u32 s2, 256")
    A("s_cbranch_scc1 L_end")
    if OPT["stamps"]:
        A("s_memrealtime s[66:67]")
        A("s_waitcnt lgkmcnt(0)")
        A(f"s_mov_b32 s{ST0}, s66")
    A(f"""
    v_lshrrev_b32 v2, 6, v0
    v_and_b32 v1, 63, v0
    v_readfirstlane_b32 {sW}, v2
    s_lshr_b32 {sT1}, s2, 3
    s_cmp_ge_u32 {sT1}, 28
    s_cbranch_scc1 L_conv
    """)
    gemm_path(A)
    A.label("L_conv")
    A.reset()
    conv_path(A)
    A.label("L_end")
    A("s_endpgm")
    head = open("cdna_kernels/%s.s.ref" % NAME).read().split("; Override launch")[0]
    txt = head
    txt += "; One persistent launch: 224 workgroups run the four GEMMs on 64-token blocks, 32 run the long convolution.\n"
    txt += "; Generated by a script (hand-written templates); hand-offs go through d_ws with per-workgroup phase words.\n"
    txt += f"; @launch grid=(256,1,1) block=(256,1,1) lds={LDS_BYTES}\n"
    txt += f""".amdgcn_target "amdgcn-amd-amdhsa--gfx950"
.text
.globl {NAME}_kernel
.p2align 8
.type {NAME}_kernel,@function
{NAME}_kernel:
"""
    txt += A.text()
    txt += f""".section .rodata,"a"
.p2align 6
.amdhsa_kernel {NAME}_kernel
  .amdhsa_next_free_vgpr 512
  .amdhsa_next_free_sgpr 102
  .amdhsa_accum_offset 256
  .amdhsa_group_segment_fixed_size 0
  .amdhsa_kernarg_size 112
  .amdhsa_user_sgpr_count 2
  .amdhsa_user_sgpr_kernarg_segment_ptr 1
  .amdhsa_system_sgpr_workgroup_id_x 1
  .amdhsa_float_denorm_mode_32 3
.end_amdhsa_kernel
"""
    return txt


if __name__ == "__main__":
    out = sys.argv[1]
    for o in sys.argv[2:]:
        k, _, val = o.partition("=")
        OPT[k] = eval(val) if val else True
    open(out, "w").write(build())
```
